```python
import torch

def _softmax(x, axis=-1):
    return torch.softmax(x, dim=axis)
def _gelu(x):
    return torch.nn.functional.gelu(x, approximate="tanh")
def _silu(x):
    return torch.nn.functional.silu(x)
def _sigmoid(x):
    return torch.sigmoid(x)
def _layernorm(x, axis=-1, eps=1e-5):
    m = x.mean(dim=axis, keepdim=True)
    v = x.var(dim=axis, keepdim=True, unbiased=False)
    return (x - m) / torch.sqrt(v + eps)
def _scatter_add(tgt, idx, src, axis=0):
    return tgt.clone().index_add_(axis, idx, src)
def _segment_sum(src, seg, n):
    out = torch.zeros((n,) + src.shape[1:], dtype=src.dtype)
    return out.index_add_(0, seg, src)
def _pad(x, pw):
    flat = tuple(v for pair in reversed(pw) for v in pair)
    return torch.nn.functional.pad(x, flat)

kernel_name = 'concat_heads__sliding_local_dilated__linear_attn_block__prompt'

def setup_inputs():

    _w = (lambda a: (lambda t: t.to(torch.bfloat16) if t.is_floating_point() else t)(torch.as_tensor(a)))
    def _A_setup():
        B, S, D = 1, 2048, 576
        return {
            "x": _w((lambda *s: torch.randn(*s, dtype=torch.bfloat16) * 0.2)(B, S, D)),
            "wqkv": _w((lambda *s: torch.randn(*s, dtype=torch.bfloat16) * 0.2)(D, 3 * D)),
            "wo": _w((lambda *s: torch.randn(*s, dtype=torch.bfloat16) * 0.05)(D, D)),
        }
    _A_in = _A_setup()

    def _B_setup():
        B, S, D = 1, 2048, 576
        return {
            "x": _w((lambda *s: torch.randn(*s, dtype=torch.bfloat16) * 0.05)(B, S, D)),
            "wqkv": _w((lambda *s: torch.randn(*s, dtype=torch.bfloat16) * 0.8)(D, 3 * D)),
            "wo": _w((lambda *s: torch.randn(*s, dtype=torch.bfloat16) * 0.8)(D, D)),
        }
    _B_in = _B_setup()

    return {
        "A_x": _A_in["x"],
        "A_wqkv": _A_in["wqkv"],
        "A_wo": _A_in["wo"],
        "B_x": _B_in["x"],
        "B_wqkv": _B_in["wqkv"],
        "B_wo": _B_in["wo"],
    }

def reference(A_x, A_wqkv, A_wo, B_x, B_wqkv, B_wo):
    def _A_ref(x, wqkv, wo):
        B, S, D = x.shape
        H = 32; Dh = D // H
        W, dil = 8, 2
        qkv = (lambda x, *d: x.permute(*d))((x @ wqkv).reshape(B, S, 3, H, Dh), 2, 0, 3, 1, 4)
        q, k, v = qkv[0], qkv[1], qkv[2]
        scale = Dh ** -0.5
        pos = torch.arange(S)
        off = torch.arange(W) * dil
        idx = pos[:, None] - off[None, :]
        mask = idx >= 0
        idx_c = torch.where(mask, idx, 0).reshape(-1)
        kg = k[:, :, idx_c, :].reshape(B, H, S, W, Dh)
        vg = v[:, :, idx_c, :].reshape(B, H, S, W, Dh)
        logits = torch.einsum("bhsd,bhswd->bhsw", q, kg) * scale
        logits = torch.where(mask[None, None, :, :], logits, -1e9)
        attn = _softmax(logits, axis=-1)
        o = torch.einsum("bhsw,bhswd->bhsd", attn, vg)
        return (lambda x, *d: x.permute(*d))(o, 0, 2, 1, 3).reshape(B, S, D) @ wo

    def _B_ref(x, wqkv, wo):
        B, S, D = x.shape
        H = 32; Dh = D // H
        qkv = (lambda x, *d: x.permute(*d))((x @ wqkv).reshape(B, S, 3, H, Dh), 2, 0, 3, 1, 4)
        q, k, v = qkv[0], qkv[1], qkv[2]
        phi = lambda t: torch.where(t > 0, t + 1, torch.exp(t)) + 1e-6
        pq, pk = phi(q), phi(k)
        kv = torch.einsum("bhsd,bhse->bhde", pk, v)
        z = torch.einsum("bhsd->bhd", pk)
        num = torch.einsum("bhqd,bhde->bhqe", pq, kv)
        den = torch.einsum("bhqd,bhd->bhq", pq, z)[..., None] + 1e-6
        o = num / den
        return (lambda x, *d: x.permute(*d))(o, 0, 2, 1, 3).reshape(B, S, D) @ wo

    a = _A_ref(A_x, A_wqkv, A_wo)
    b = _B_ref(B_x, B_wqkv, B_wo)
    return torch.concatenate([a, b], axis=-1)
```

```python
def header(launches):
    s = ""
    for (k, g, b, lds) in launches:
        s += f"; @launch kernel={k} grid=({g},1,1) block=({b},1,1) lds={lds}\n"
    s += '.amdgcn_target "amdgcn-amd-amdhsa--gfx950"\n.text\n'
    return s

def kernel_begin(name):
    return f".globl {name}\n.p2align 8\n.type {name},@function\n{name}:\n"

def descriptor(name, vgpr, accum, sgpr=102):
    return f""".p2align 6
.amdhsa_kernel {name}
  .amdhsa_next_free_vgpr {vgpr}
  .amdhsa_next_free_sgpr {sgpr}
  .amdhsa_accum_offset {accum}
  .amdhsa_group_segment_fixed_size 0
  .amdhsa_kernarg_size 72
  .amdhsa_user_sgpr_count 2
  .amdhsa_user_sgpr_kernarg_segment_ptr 1
  .amdhsa_system_sgpr_workgroup_id_x 1
.end_amdhsa_kernel
"""

class Asm:
    def __init__(self):
        self.lines = []
    def __call__(self, text):
        for l in text.strip("\n").split("\n"):
            self.lines.append(l if l.rstrip().endswith(":") else "    " + l.strip())
    def text(self):
        return "\n".join(self.lines) + "\n"
```

```python
import re

TRANS = ("v_exp_f32", "v_log_f32", "v_rcp_f32", "v_rsq_f32", "v_sqrt_f32", "v_sin_f32", "v_cos_f32")
REG = re.compile(r"^(-|abs\()?([vs])(?:\[(\d+):(\d+)\]|(\d+))\)?$")

def regs(tok):
    tok = tok.strip()
    if tok == "vcc": return {("s", "vcc")}
    if tok == "m0": return {("s", "m0")}
    if tok == "exec": return {("s", "exec")}
    m = REG.match(tok)
    if not m: return set()
    k = m.group(2)
    if m.group(5) is not None: return {(k, int(m.group(5)))}
    return {(k, n) for n in range(int(m.group(3)), int(m.group(4)) + 1)}

class Ins:
    def __init__(self, text):
        self.text = text
        t = text.split(";")[0].strip()
        self.label = t.endswith(":")
        self.op = "" if self.label or not t or t.startswith(".") else t.split()[0]
        rest = t[len(self.op):].strip() if self.op else ""
        ops = [o.strip() for o in rest.split(",")] if rest else []
        if ops:
            last = ops[-1].split()
            ops[-1] = last[0] if last else ""
            self.mods = last[1:]
        else:
            self.mods = []
        op = self.op
        self.states = 1
        self.w = set(); self.r = set(); self.srcc = set(); self.ab = set(); self.sdata = set()
        self.valu = op.startswith("v_") and not op.startswith("v_mfma")
        self.mfma = op.startswith("v_mfma")
        self.vmem = op.startswith("buffer_") or op.startswith("global_")
        self.ds = op.startswith("ds_")
        self.salu = op.startswith("s_")
        self.trans = any(op.startswith(x) for x in TRANS)
        self.perm = op.startswith("v_permlane")
        self.rfl = op.startswith("v_readfirstlane") or op.startswith("v_readlane")
        self.dma = self.vmem and "lds" in self.mods
        R = [regs(o) for o in ops]
        U = lambda xs: set().union(*xs) if xs else set()
        if op == "s_nop":
            self.states = int(ops[0], 0) + 1
        elif self.mfma:
            self.w = R[0]; self.ab = R[1] | R[2]; self.srcc = R[3]; self.r = self.ab | self.srcc
        elif self.perm:
            self.w = R[0] | R[1]; self.r = R[0] | R[1]
        elif self.valu:
            self.w = R[0]; self.r = U(R[1:])
            if op.startswith(("v_add_co", "v_addc_co", "v_sub_co", "v_subb_co")):
                self.w = R[0] | R[1]; self.r = U(R[2:])
            if op.startswith(("v_fmac", "v_pk_fmac")): self.r |= R[0]
        elif self.ds:
            if "read" in op: self.w = R[0]; self.r = U(R[1:])
            else: self.r = U(R)
        elif self.vmem:
            if "store" in op or "atomic" in op:
                self.r = U(R)
                if "x3" in op or "x4" in op: self.sdata = R[0]
            elif self.dma: self.r = U(R) | {("s", "m0")}
            else: self.w = R[0]; self.r = U(R[1:])
        elif self.salu and ops and not op.startswith(("s_cmp", "s_cbranch", "s_branch", "s_waitcnt", "s_sleep", "s_barrier", "s_setprio", "s_bitcmp", "s_endpgm")):
            self.w = R[0]; self.r = U(R[1:])
        elif self.salu:
            self.r = U(R)

def need(p, c):
    n = 0
    vw = {x for x in p.w if x[0] == "v"}; sw = {x for x in p.w if x[0] == "s"}
    if p.valu:
        if c.mfma and vw & c.r: n = max(n, 2)
        if p.trans and c.valu and not c.trans and vw & c.r: n = max(n, 1)
        if c.perm and vw & c.r: n = max(n, 2)
        if c.rfl and vw & c.r: n = max(n, 1)
        if c.valu and sw & c.r: n = max(n, 2)
        if c.vmem and sw & c.r: n = max(n, 5)
    if p.mfma:
        if c.mfma:
            if vw & c.ab: n = max(n, 8)
            if vw & c.srcc and vw != c.srcc: n = max(n, 6)
        elif (c.valu or c.vmem or c.ds) and vw & (c.r | c.w): n = max(n, 8)
        if c.valu and p.srcc & c.w: n = max(n, 3)
    if p.salu and ("s", "m0") in p.w and c.dma: n = max(n, 1)
    if p.sdata and p.sdata & c.w: n = max(n, 2)
    return n

def deficit(hist, c):
    d = 0; dist = 0
    for p in reversed(hist):
        if dist >= 12: break
        d = max(d, need(p, c) - dist)
        dist += p.states
    return d

def pad(lines):
    out = []; hist = []
    for l in lines:
        c = Ins(l)
        if c.op:
            d = deficit(hist, c)
            if d > 0:
                nop = Ins(f"    s_nop {d-1}"); out.append(nop); hist.append(nop)
            hist.append(c)
            if c.op in ("s_branch", "s_endpgm"): hist = []
        out.append(c)
    check_edges(out)
    return [c.text for c in out]

def check_edges(ins):
    lab = {c.text.strip()[:-1]: n for n, c in enumerate(ins) if c.label}
    for n, c in enumerate(ins):
        if c.op.startswith(("s_cbranch", "s_branch")):
            tgt = c.text.split(";")[0].split()[1]
            hist = [x for x in ins[max(0, n-24):n+1] if x.op]
            for x in ins[lab[tgt]:lab[tgt]+24]:
                if not x.op: continue
                if deficit(hist, x) > 0:
                    raise RuntimeError(f"hazard across edge {c.text.strip()} -> {x.text.strip()}")
                hist.append(x)
                if x.op in ("s_branch", "s_endpgm"): break
```

```python
import struct, sys
from asmlib import Asm
import hz

NAME = "concat_heads__sliding_local_dilated__linear_attn_block__prompt_kernel"
OPT = dict(stamps=0, look=2, spin=40000, sleep=4)
for arg in sys.argv[2:]:
    k, v = arg.split("="); OPT[k] = int(v)
STAMPS = OPT["stamps"]

def f32(x): return "0x%08x" % struct.unpack("<I", struct.pack("<f", x))[0]
LOG2E = 1.4426950408889634
EPS = 1e-6
CSC = 18 ** -0.5 * LOG2E
NEG = -1e30
OOB = 0x40000000

SLOT = [110592, 0, 36864, 73728]
WOFF = 18432
QX = 92160
EXA = 110592
HALO = 148992
KVI = 151552
TRASH = 157696
NONCE = 163824
OUTST = 110592
OPITCH = 176
WS_PART = 0x500000
WS_FLAG1 = 0x600000
WS_FLAG2 = 0x620000
WS_STAMP = 0x800000
X, W, WO, OUT, WS, DBG, E = (f"s[{n}:{n+3}]" for n in (8, 12, 16, 20, 24, 28, 32))
sBR, sR, sG, sKC, sWAVE, sP, sT, sT2 = (f"s{n}" for n in range(36, 44))
M1, M2, M3, NON, MI8 = "s[44:45]", "s[46:47]", "s[48:49]", "s[50:51]", "s[52:53]"
sXB, sKW, sKX, sKE, sE0, sEk, sEl, sLx, sLw, sROT = (f"s{n}" for n in range(54, 64))
sTILE, sTAU, sCNT, sSLOT, sC0, sC1, sLO, sHI, sFL, sFB = (f"s{n}" for n in range(64, 74))
sPAIR = "s[74:75]"

a = Asm()
def v(n, w=1): return f"v{n}" if w == 1 else f"v[{n}:{n+w-1}]"
def stamp(n):
    if STAMPS: a(f"s_memrealtime s[{82+2*n}:{83+2*n}]")
def mfma(d, x, y, c=None):
    c = v(d, 4) if c is None else c
    a(f"v_mfma_f32_16x16x32_bf16 {v(d,4)}, {v(x,4)}, {v(y,4)}, {c}")
def cvt(d, x): a(f"v_cvt_pk_bf16_f32 v{d}, v{x}, v{x+1}")
def swap23(dst, src, t):
    a(f"""v_and_b32 v{dst}, 0x13, v{src}
    v_and_b32 v{t}, 4, v{src}
    v_lshl_or_b32 v{dst}, v{t}, 1, v{dst}
    v_bfe_u32 v{t}, v{src}, 3, 1
    v_lshl_or_b32 v{dst}, v{t}, 2, v{dst}""")
def step_pos(n):
    assert all((F * 6554) >> 16 == F // 10 for F in range(320))
    a(f"""v_add_u32 v1, {64*n}, v0
    v_mul_u32_u24 v2, 6554, v1
    v_lshrrev_b32 v2, 16, v2
    v_mul_u32_u24 v3, 10, v2
    v_sub_u32 v3, v1, v3""")
def finish_pat(dst, rowreg, pitch_s):
    a(f"""v_mul_lo_u32 v{dst}, v{rowreg}, {pitch_s}
    v_lshl_add_u32 v{dst}, v3, 4, v{dst}
    v_add_u32 v{dst}, {sT2}, v{dst}
    v_cmp_eq_u32 vcc, 9, v3
    v_cndmask_b32 v{dst}, v{dst}, v9, vcc""")
def frag_lane_addr(dst, pitch):
    a(f"""v_lshrrev_b32 v1, 5, v0
    v_bfe_u32 v2, v0, 2, 3
    v_lshl_add_u32 v1, v1, 4, v2
    v_mul_u32_u24 v1, {pitch}, v1
    v_and_b32 v2, 3, v0
    v_lshl_add_u32 v{dst}, v2, 3, v1""")
def x_lane_addr(dst):
    a(f"""v_and_b32 v1, 15, v0
    v_lshrrev_b32 v2, 4, v0
    v_lshrrev_b32 v3, 1, v1
    v_xor_b32 v2, v2, v3
    v_lshlrev_b32 v2, 4, v2
    v_lshl_add_u32 v{dst}, v1, 7, v2""")
def trd(d, addr, off):
    a(f"ds_read_b64_tr_b16 {v(d,2)}, v{addr} offset:{off}")

stamp(0)
a(f"""
s_load_dwordx16 s[64:79], s[0:1], 0
s_load_dwordx2 s[80:81], s[0:1], 64
s_cmp_ge_u32 s2, 256
s_cbranch_scc1 L_end
s_and_b32 s3, s2, 7
s_lshr_b32 s4, s2, 3
s_lshr_b32 {sBR}, s3, 2
s_and_b32 s5, s4, 7
s_lshr_b32 s6, s4, 3
s_and_b32 s7, s3, 1
s_lshl_b32 s7, s7, 3
s_add_u32 {sR}, s7, s5
s_bfe_u32 s7, s3, 0x10001
s_lshl_b32 s7, s7, 2
s_add_u32 {sG}, s7, s6
s_lshl_b32 s7, s6, 1
s_add_u32 {sROT}, s7, s5
s_cmp_ge_u32 {sROT}, 9
s_cselect_b32 s7, 9, 0
s_sub_u32 {sROT}, {sROT}, s7
v_lshrrev_b32 v1, 6, v0
v_and_b32 v0, 63, v0
v_readfirstlane_b32 {sWAVE}, v1
v_lshrrev_b32 v2, 3, v0
v_mul_u32_u24 v3, 2304, v2
v_and_b32 v4, 7, v0
v_lshrrev_b32 v5, 4, v0
v_xor_b32 v4, v4, v5
v_lshl_add_u32 v10, v4, 4, v3
v_xor_b32 v11, 64, v10
s_and_b32 {sP}, {sWAVE}, 3
s_lshl_b32 s3, {sR}, 7
s_lshr_b32 s4, {sP}, 1
s_lshl_b32 s4, s4, 6
s_add_u32 s3, s3, s4
s_and_b32 s4, {sP}, 1
s_add_u32 s3, s3, s4
s_mul_i32 {sXB}, s3, 1152
s_lshl_b32 {sLx}, {sP}, 12
s_lshl_b32 {sLw}, {sP}, 11
s_mov_b32 {sKC}, {sROT}
s_mov_b32 s10, 2359296
s_mov_b32 s11, 0x20000
s_mov_b32 s14, 1990656
s_mov_b32 s15, 0x20000
s_mov_b32 s18, 663552
s_mov_b32 s19, 0x20000
s_mov_b32 s22, 4718592
s_mov_b32 s23, 0x20000
s_mov_b32 s26, 0x10000000
s_mov_b32 s27, 0x20000
s_mov_b32 s30, 256
s_mov_b32 s31, 0x20000
s_mov_b32 s35, 0x20000
s_mov_b32 s44, 0xffff0000
s_mov_b32 s45, -1
s_mov_b32 s46, 0
s_mov_b32 s47, -1
s_mov_b32 s48, 0
s_mov_b32 s49, 0xffff0000
s_mov_b32 s52, 0x00ff00ff
s_mov_b32 s53, 0x00ff00ff
s_cmp_eq_u32 {sBR}, 0
s_waitcnt lgkmcnt(0)
s_cselect_b32 s8, s64, s70
s_cselect_b32 s9, s65, s71
s_cselect_b32 s12, s66, s72
s_cselect_b32 s13, s67, s73
s_cselect_b32 s16, s68, s74
s_cselect_b32 s17, s69, s75
s_mov_b32 s20, s76
s_mov_b32 s21, s77
s_mov_b32 s28, s78
s_mov_b32 s29, s79
s_mov_b32 s24, s80
s_mov_b32 s25, s81
s_cmp_lt_u32 {sP}, 2
s_cselect_b32 s32, s12, s8
s_cselect_b32 s33, s13, s9
s_cselect_b32 s34, s14, s10
s_cmp_lt_u32 {sWAVE}, 4
s_cbranch_scc1 L_kv
""")

def q_x_dma(c):
    slot = SLOT[c % 4]
    a(f"s_lshl_b32 {sKX}, {sKC}, 7\ns_add_u32 {sKX}, {sKX}, {sXB}")
    for T in range(2):
        for jo in range(2):
            a(f"s_add_u32 m0, {sLx}, {slot + T*2048 + jo*1024}")
            so = (32*T + 16*jo) * 1152
            if so: a(f"s_add_u32 {sT}, {sKX}, {so}")
            a(f"buffer_load_dwordx4 v{10+jo}, {X}, {sT if so else sKX} offen lds")
def q_w_dma(c):
    slot = SLOT[c % 4]
    a(f"s_mul_i32 {sKW}, {sKC}, 221184\ns_mul_i32 {sKE}, {sKC}, {sEk}\ns_add_u32 {sKE}, {sKE}, {sE0}")
    for half in range(2):
        if half: a(f"s_add_u32 {sKW}, {sKW}, 110592")
        for n2 in range(2):
            a(f"s_add_u32 m0, {sLw}, {slot + WOFF + n2*1024 + half*9216}")
            a(f"buffer_load_dwordx4 v{12+n2}, {W}, {sKW} offen lds")
    a(f"s_add_u32 m0, {sEl}, {slot}")
    a(f"buffer_load_dwordx4 v14, {E}, {sKE} offen lds")
    a(f"s_add_u32 {sKC}, {sKC}, 1\ns_cmp_eq_u32 {sKC}, 9\ns_cselect_b32 {sKC}, 0, {sKC}")
def q_wq_dma(j):
    a(f"""s_lshr_b32 {sT}, {sP}, 1
    s_add_u32 {sT}, {sT}, {sROT}
    s_add_u32 {sT}, {sT}, {2*j}
    s_cmp_ge_u32 {sT}, 9
    s_cselect_b32 {sT2}, 9, 0
    s_sub_u32 {sT}, {sT}, {sT2}
    s_lshl_b32 {sT}, {sT}, 1
    s_and_b32 {sT2}, {sP}, 1
    s_add_u32 {sT}, {sT}, {sT2}
    s_mul_i32 {sKW}, {sT}, 110592
    s_mul_i32 {sT2}, {sP}, 5120""")
    if j == 4: a(f"s_cmp_lt_u32 {sP}, 2\ns_cselect_b32 {sKW}, {sKW}, {OOB}")
    for n in range(5):
        a(f"s_add_u32 m0, {sT2}, {j*20480 + n*1024}")
        a(f"buffer_load_dwordx4 v{q_wq_dma.base+n}, {W}, {sKW} offen lds")
q_wq_dma.base = 15
def wkv_pat(dst, freg):
    assert all((F * 3641) >> 16 == F // 18 for F in range(576))
    a(f"""v_mul_u32_u24 v2, 3641, v{freg}
    v_lshrrev_b32 v2, 16, v2
    v_mul_u32_u24 v3, 18, v2
    v_sub_u32 v3, v{freg}, v3""")
    swap23(4, 2, 5)
    a(f"""v_mul_u32_u24 v4, 3456, v4
    v_lshl_add_u32 v4, v3, 4, v4
    v_mul_u32_u24 v5, 57, v3
    v_lshrrev_b32 v5, 9, v5
    v_mul_u32_u24 v5, 1008, v5
    v_add3_u32 v{dst}, v4, v5, {sT2}""")

q_x_dma(0)
a(f"""
s_mul_i32 {sT2}, {sG}, 144
s_add_u32 {sT2}, {sT2}, 1152
s_lshl_b32 {sT}, {sP}, 7
v_add_u32 v1, {sT}, v0
""")
wkv_pat(12, 1)
a("v_add_u32 v1, 64, v1"); wkv_pat(13, 1)
a("v_add_u32 v1, 512, v0"); wkv_pat(14, 1)
a(f"""
s_mul_i32 {sE0}, {sP}, 110592
s_mov_b32 {sEk}, 221184
s_mul_i32 {sEl}, {sP}, 9216
s_add_u32 {sEl}, {sEl}, {WOFF + 8192}
s_cmp_lt_u32 {sP}, 2
s_cbranch_scc1 L_q_e
s_lshl_b32 {sT}, {sR}, 7
s_sub_u32 {sT}, {sT}, 13
s_sub_u32 {sT}, {sT}, {sP}
s_mul_i32 {sE0}, {sT}, 1152
s_movk_i32 {sEk}, 128
s_lshl_b32 {sEl}, {sP}, 10
s_add_u32 {sEl}, {sEl}, {16384 - 2048}
s_cmp_eq_u32 {sP}, 2
s_cselect_b64 vcc, -1, 0
v_cndmask_b32 v14, v11, v10, vcc
s_cmp_eq_u32 {sR}, 0
s_cselect_b32 {sE0}, {OOB}, {sE0}
s_cmp_eq_u32 {sBR}, 1
s_cselect_b32 {sE0}, {OOB}, {sE0}
L_q_e:
""")
q_w_dma(0)
LOOK = OPT["look"]
for c in range(1, LOOK): q_x_dma(c); q_w_dma(c)
a(f"s_mul_i32 {sT2}, {sG}, 144\ns_movk_i32 {sT}, 3456\nv_mov_b32 v9, {OOB}")
for n in range(5):
    step_pos(n); swap23(4, 2, 5); finish_pat(15 + n, 4, sT)
x_lane_addr(24)
a(f"""
v_add_u32 v20, {sLx}, v24
v_xor_b32 v21, 64, v20
v_add_u32 v22, 73728, v20
v_add_u32 v23, 73728, v21
v_add_u32 v24, 16384, v24
v_xor_b32 v25, 64, v24
""")
frag_lane_addr(26, 288)
a(f"""
s_lshl_b32 {sT}, {sP}, 5
s_add_u32 {sT}, {sT}, {WOFF}
s_cmp_eq_u32 {sP}, 1
s_cselect_b32 {sT2}, 144, 0
s_add_u32 {sT2}, {sT2}, {WOFF + 128}
v_add_u32 v28, {sT2}, v26
v_add_u32 v26, {sT}, v26
v_add_u32 v27, 144, v26
""")
frag_lane_addr(29, 160)
a("v_add_u32 v30, 46080, v29")
for n in range(12): a(f"v_mov_b32 v{32+n}, 0")

plan = {}
for c in range(LOOK, 9): plan.setdefault(c - LOOK, []).append(("c", c))
if LOOK == 2: wq_at = {0: 7, 1: 7, 2: 8, 3: 10, 4: 10}
else:         wq_at = {0: 6, 1: 7, 2: 7, 3: 8, 4: 8}
for j in range(5): plan.setdefault(wq_at[j], []).append(("q", j))
issued = [("c", c) for c in range(LOOK)]
def q_wait(item):
    n = sum(9 if k == "c" else 5 for k, _ in issued[issued.index(item) + 1:])
    a(f"s_waitcnt vmcnt({n})")
def q_issue(b):
    for it in plan.get(b, []):
        if it[0] == "c": q_x_dma(it[1]); q_w_dma(it[1])
        else: q_wq_dma(it[1])
        issued.append(it)

for c in range(9):
    slot = SLOT[c % 4]
    q_wait(("c", c))
    a("s_barrier")
    if c == 0: stamp(1)
    if c == 8: stamp(2)
    q_issue(c)
    hi = slot >= 73728
    for s in range(2):
        for T in range(2):
            a(f"ds_read_b128 {v(112 + 16*c + 8*s + 4*T, 4)}, v{20 + s + 2*hi} offset:{slot - 73728*hi + T*2048}")
    a(f"s_cmp_eq_u32 {sBR}, 0\ns_cbranch_scc0 L_q_nh{c}")
    for n in range(5): a(f"v_add_u32 v{1+n}, {slot}, v{24+n}")
    def halo_reads(s):
        a(f"ds_read_b128 {v(72 + 4*s, 4)}, v{1+s}")
        for n in range(3):
            for h in range(2): trd(80 + 8*n + 4*s + 2*h, 3 + n, (32*s + 8*h) * 288)
    def halo_mfma(s):
        mfma(32, 80 + 4*s, 72 + 4*s)
        mfma(36, 72 + 4*s, 88 + 4*s)
        a(f"s_cmp_eq_u32 {sP}, 1\ns_cbranch_scc1 L_q_hv{c}_{s}")
        mfma(40, 96 + 4*s, 72 + 4*s)
        a(f"s_branch L_q_hd{c}_{s}\nL_q_hv{c}_{s}:")
        mfma(40, 72 + 4*s, 96 + 4*s)
        a(f"L_q_hd{c}_{s}:")
    halo_reads(0); a("s_waitcnt lgkmcnt(0)"); halo_reads(1); halo_mfma(0)
    a("s_waitcnt lgkmcnt(0)"); halo_mfma(1)
    a(f"L_q_nh{c}:\ns_waitcnt lgkmcnt(0)")

def att_consts():
    a(f"""v_and_b32 v72, 15, v0
    v_lshrrev_b32 v73, 4, v0
    v_lshlrev_b32 v73, 2, v73
    v_mov_b32 v77, {f32(NEG)}
    v_mov_b32 v78, 0xffff
    v_mov_b32 v79, 0xffff0000""")
    for r in range(4):
        a(f"""v_add_u32 v74, {r}, v73
        v_sub_u32 v75, v72, v74
        v_cmp_gt_u32 vcc, 8, v75
        v_sub_u32 v76, v74, v72
        v_cndmask_b32 v{12+r}, v77, 0, vcc
        v_cmp_le_i32 vcc, {sLO}, v76
        v_cndmask_b32 v{16+r}, v77, 0, vcc
        v_cmp_lt_u32 vcc, {sHI}, v74
        v_cndmask_b32 v{16+r}, v{16+r}, v77, vcc
        v_cmp_ge_i32 vcc, 0, v76""")
        if r % 2 == 0: a(f"v_cndmask_b32 v{20 + r//2}, 0, v78, vcc")
        else: a(f"v_cndmask_b32 v80, 0, v79, vcc\nv_or_b32 v{20 + r//2}, v{20 + r//2}, v80")

for n in range(5): a(f"v_mov_b32 v{5+n}, v{15+n}")
q_wq_dma.base = 5
a(f"""
s_cmp_eq_u32 {sBR}, 0
s_cbranch_scc0 L_q_b9
""")
for n in range(3): cvt(44 + 2*n, 32 + 4*n); cvt(45 + 2*n, 34 + 4*n)
a(f"""
s_lshr_b32 {sT}, {sP}, 1
s_lshl_b32 {sT}, {sT}, 10
s_and_b32 {sT2}, {sP}, 1
s_lshl_b32 {sT2}, {sT2}, 3
s_add_u32 {sT}, {sT}, {sT2}
s_add_u32 {sT}, {sT}, {HALO + 2560}
v_lshl_add_u32 v1, v0, 4, {sT}
s_lshl_b32 {sT}, {sP}, 10
s_add_u32 {sT}, {sT}, {HALO + 5120 + 8}
v_lshl_add_u32 v2, v0, 4, {sT}
s_cmp_eq_u32 {sP}, 1
s_cselect_b32 {sT}, {5120 + 4096 + 8 - 2560 - 2048}, 0
s_cselect_b32 {sT2}, 4, 3
s_add_u32 {sT}, {sT}, {HALO + 2560 + 2048}
v_lshlrev_b32 v3, {sT2}, v0
v_add_u32 v3, {sT}, v3
ds_write_b64 v1, v[44:45]
ds_write_b64 v2, v[46:47]
s_cmp_lt_u32 {sP}, 2
s_cbranch_scc0 L_q_h3
ds_write_b64 v3, v[48:49]
L_q_h3:
s_movk_i32 {sLO}, 9
s_movk_i32 {sHI}, 15
s_cmp_eq_u32 {sP}, 1
s_cselect_b32 {sLO}, 1, {sLO}
s_cselect_b32 {sHI}, 7, {sHI}
s_lshr_b32 {sT}, {sP}, 1
s_or_b32 {sT}, {sT}, {sR}
s_cmp_eq_u32 {sT}, 0
s_cselect_b32 {sLO}, 64, {sLO}
""")
att_consts()
a(f"""
s_mul_i32 {sT}, {sP}, 10240
s_add_u32 {sT}, {sT}, {EXA}
s_sub_u32 {sT2}, {sT}, 20480
s_cmp_lt_u32 {sP}, 2
s_cselect_b32 {sT2}, {HALO}, {sT2}
v_lshl_add_u32 v22, v0, 4, {sT}
v_lshl_add_u32 v23, v0, 3, {sT}
v_lshl_add_u32 v24, v0, 4, {sT2}
v_lshl_add_u32 v25, v0, 3, {sT2}
L_q_b9:
s_cmp_eq_u32 {sBR}, 0
s_cselect_b32 {sT}, 0, {f32(EPS)}
s_waitcnt lgkmcnt(0)
""")
for n in range(40): a(f"v_mov_b32 v{32+n}, {sT}")
a(f"""
s_mul_i32 {sT}, {sP}, 2560
s_add_u32 {sT}, {sT}, {QX}
v_lshl_add_u32 v26, v0, 4, {sT}
v_lshl_add_u32 v27, v0, 3, {sT}
""")

def wq_reads(s):
    buf = 72 + 20 * (s & 1)
    for t in range(5):
        for h in range(2): trd(buf + 4*t + 2*h, 29 + (s >= 9), (s - 9*(s >= 9)) * 5120 + h * 1280 + 32*t)
q_wait(("q", 0))
a("s_barrier")
stamp(3)
q_issue(9)
wq_reads(0)
for s in range(18):
    buf = 72 + 20 * (s & 1)
    edge = s % 4 == 3
    if edge:
        a("s_waitcnt lgkmcnt(0)")
        q_wait(("q", s // 4 + 1))
        a("s_barrier")
        q_issue(10 + s // 4)
    if s == 16:
        a(f"s_cmp_eq_u32 {sBR}, 0\ns_cbranch_scc0 L_q_nkv")
        a("s_waitcnt lgkmcnt(0)")
        a("""ds_read_b128 v[122:125], v22
        ds_read_b128 v[126:129], v22 offset:1024
        ds_read_b64 v[130:131], v23 offset:2048
        ds_read_b128 v[112:115], v24 offset:2560
        ds_read_b128 v[116:119], v24 offset:3584
        ds_read_b64 v[120:121], v25 offset:4608""")
        for t in range(5):
            if t == 3: a("s_waitcnt lgkmcnt(4)")
            a(f"ds_read_b64 {v(134 + 4*t, 2)}, v22 offset:{5120 + 1024*t}")
            a(f"ds_read_b64 {v(132 + 4*t, 2)}, v24 offset:{5128 + 1024*t}")
        a("s_waitcnt lgkmcnt(0)\nL_q_nkv:")
    for t in range(5):
        if s < 17:
            nb = 72 + 20 * ((s + 1) & 1); s1 = s + 1
            for h in range(2): trd(nb + 4*t + 2*h, 29 + (s1 >= 9), (s1 - 9*(s1 >= 9)) * 5120 + h * 1280 + 32*t)
            if not edge: a(f"s_waitcnt lgkmcnt({10})")
        else:
            a(f"s_waitcnt lgkmcnt({8 - 2*t})")
        for T in range(2): mfma(32 + 20*T + 4*t, buf + 4*t, 112 + 8*s + 4*T)
stamp(4)
a(f"""
v_mov_b32 v1, {NONCE}
ds_read_b64 v[10:11], v1
s_cmp_eq_u32 {sBR}, 0
s_cbranch_scc0 L_q_phi
""")
def qx_write(src):
    a(f"ds_write_b128 v26, {v(src,4)}\nds_write_b128 v26, {v(src+4,4)} offset:1024\nds_write_b64 v27, {v(src+8,2)} offset:2048")
for n in range(10): cvt(162 + n, 52 + 2*n)
qx_write(162)
for n in range(10): cvt(152 + n, 32 + 2*n)
a("s_waitcnt lgkmcnt(0)\ns_barrier\ns_branch L_att")

def phi_pair(dst, src, t):
    a(f"""v_pk_fma_f32 {v(t,2)}, {v(src,2)}, {sPAIR}, v[8:9] op_sel_hi:[1,1,0]
    v_max_f32 v{src}, {sC0}, v{src}
    v_exp_f32_e64 v{t}, v{t} clamp
    v_max_f32 v{src+1}, {sC0}, v{src+1}
    v_exp_f32_e64 v{t+1}, v{t+1} clamp""")
def phi_fin(dst, src, t):
    a(f"v_pk_add_f32 {v(src,2)}, {v(src,2)}, {v(t,2)}"); cvt(dst, src)
def phi_consts():
    a(f"s_mov_b32 s74, {f32(LOG2E)}\ns_mov_b32 s75, {f32(LOG2E)}\ns_mov_b32 {sC0}, {f32(EPS)}\nv_mov_b32 v8, {f32(-EPS*LOG2E)}")
def phi_list(items, tbase):
    for n, (d, s_) in enumerate(items):
        phi_pair(d, s_, tbase + 2*(n & 1))
        if n: phi_fin(*items[n-1], tbase + 2*((n-1) & 1))
    phi_fin(*items[-1], tbase + 2*((len(items)-1) & 1))

a("L_q_phi:")
phi_consts()
phi_list([(162 + n, 52 + 2*n) for n in range(10)], 2)
qx_write(162)
phi_list([(152 + n, 32 + 2*n) for n in range(10)], 2)
a("s_waitcnt lgkmcnt(0)\ns_barrier\ns_branch L_ob")

a("L_kv:")
a(f"""
s_cmp_eq_u32 s2, 0
s_cbranch_scc0 L_kv_nn
s_cmp_eq_u32 {sWAVE}, 0
s_cbranch_scc0 L_kv_nn
s_memrealtime {NON}
v_mov_b32 v1, 0
s_waitcnt lgkmcnt(0)
s_or_b32 s50, s50, 1
v_mov_b32 v2, s50
v_mov_b32 v3, s51
buffer_store_dwordx2 v[2:3], v1, {DBG}, 0 offen sc1
L_kv_nn:
""")
x_lane_addr(13)
a(f"v_add_u32 v13, {sLx}, v13\nv_xor_b32 v14, 64, v13")
frag_lane_addr(15, 288)
a(f"v_add_u32 v15, {WOFF}, v15")
a(f"""
s_mul_i32 {sT2}, {sG}, 144
s_movk_i32 {sT}, 1152
s_cmp_eq_u32 {sBR}, 0
s_cselect_b32 {sC0}, 16, 18
s_cselect_b64 {sPAIR}, -1, 0
v_mov_b32 v9, {OOB}
""")
for n in range(5):
    step_pos(n)
    a(f"""v_lshrrev_b32 v4, 4, v2
    v_bfe_u32 v5, v2, 2, 1
    v_lshl_add_u32 v4, v4, 1, v5
    v_bfe_u32 v5, v2, 3, 1
    v_and_b32 v6, 3, v2
    v_mul_lo_u32 v7, v5, {sC0}
    v_lshl_add_u32 v7, v4, 2, v7
    v_add_u32 v7, v7, v6""")
    finish_pat(240 + n, 7, sT)
    a(f"""v_lshl_add_u32 v5, v5, 2, v6
    v_add_u32 v6, 64, v5
    v_lshrrev_b32 v7, 1, v5
    v_mul_u32_u24 v7, 18, v7
    v_and_b32 v5, 1, v5
    v_add3_u32 v7, v7, v5, 16
    v_cndmask_b32 v7, v7, v6, {sPAIR}
    v_mul_u32_u24 v4, 72, v4
    v_add_u32 v7, v7, v4""")
    finish_pat(245 + n, 7, sT)

def wo_dma(j):
    if j < 4:
        a(f"""s_lshl_b32 {sT}, {sG}, 1
        s_add_u32 {sT}, {sT}, {sP}
        s_add_u32 {sT}, {sT}, {4*j}
        s_and_b32 {sT}, {sT}, 15
        s_lshr_b32 {sT2}, {sT}, 1
        s_mul_i32 {sT2}, {sT2}, {72*1152}
        s_and_b32 {sT}, {sT}, 1
        s_mul_i32 {sT}, {sT}, {sC1}
        s_add_u32 {sKW}, {sT}, {sT2}
        s_mul_i32 {sT2}, {sP}, 5120""")
    else:
        a(f"""s_cmp_lt_u32 {sP}, 2
        s_cbranch_scc0 L_wo4_{wo_dma.n}
        s_mul_i32 {sKW}, {sP}, {288*1152}
        s_mul_i32 {sT2}, {sP}, 5120""")
    for n in range(5):
        a(f"s_add_u32 m0, {sT2}, {j*20480 + n*1024}")
        a(f"buffer_load_dwordx4 v{240 + 5*(j == 4) + n}, {WO}, {sKW} offen lds")
    if j == 4: a(f"L_wo4_{wo_dma.n}:"); wo_dma.n += 1
wo_dma.n = 0

def kv_loop(tag, tiles, accbase):
    NT = len(tiles); NI = 2 * NT; PD = 4
    q = []
    def rd_x(s):
        for T in range(2):
            a(f"ds_read_b128 {v(96 + 8*s + 4*T, 4)}, v{10+s} offset:{T*2048}"); q.append(("x", s))
    def rd_w(n):
        s, t = divmod(n, NT)
        for h in range(2):
            trd(112 + 4*t + 2*h, 12, (32*s + 8*h) * 288 + tiles[t][0]); q.append(("w", n))
    def wait(*keys):
        last = max((i for i, k in enumerate(q) if k in keys), default=-1)
        if last >= 0:
            n = len(q) - 1 - last; assert n <= 15
            a(f"s_waitcnt lgkmcnt({n})"); del q[:last + 1]
    def head():
        a(f"v_add_u32 v10, {sSLOT}, v13\nv_add_u32 v11, {sSLOT}, v14\nv_add_u32 v12, {sSLOT}, v15")
        rd_x(0)
        for n in range(PD): rd_w(n)
    a(f"s_mov_b32 {sSLOT}, {SLOT[0]}\ns_mov_b32 {sCNT}, 0\ns_barrier")
    head()
    a(f"L_kvl_{tag}:")
    for n in range(NI):
        s, t = divmod(n, NT)
        if n + PD < NI: rd_w(n + PD)
        if n == 2: rd_x(1)
        if n == NI - PD:
            a("s_waitcnt lgkmcnt(0)"); q.clear()
            a(f"""s_barrier
            s_add_u32 {sT}, {sSLOT}, 36864
            s_cmp_eq_u32 {sSLOT}, {SLOT[0]}
            s_cselect_b32 {sSLOT}, 0, {sT}""")
            head()
        if n < NI - PD: wait(("w", n), ("x", s))
        for T in range(2):
            d = accbase(T, t); xf = 96 + 8*s + 4*T; wf = 112 + 4*t
            if tiles[t][1]: mfma(d, wf, xf)
            else: mfma(d, xf, wf)
    a(f"""s_cmp_eq_u32 {sCNT}, 3
    s_cbranch_scc0 L_kvn_{tag}
    buffer_load_dwordx2 v[250:251], v252, {DBG}, 0 offen sc1
    L_kvn_{tag}:
    s_add_u32 {sCNT}, {sCNT}, 1
    s_cmp_lt_u32 {sCNT}, 9
    s_cbranch_scc1 L_kvl_{tag}""")
    a(f"""s_mov_b32 {sCNT}, 0
    L_kvp_{tag}:
    s_waitcnt vmcnt(0) lgkmcnt(0)
    v_readfirstlane_b32 s50, v250
    s_add_u32 {sCNT}, {sCNT}, 1
    s_cmp_lg_u32 s50, 0
    s_cbranch_scc1 L_kvq_{tag}
    s_cmp_ge_u32 {sCNT}, {OPT['spin']}
    s_cbranch_scc1 L_kvq_{tag}
    buffer_load_dwordx2 v[250:251], v252, {DBG}, 0 offen sc1
    s_branch L_kvp_{tag}
    L_kvq_{tag}:
    v_mov_b32 v1, {NONCE}
    ds_write_b64 v1, v[250:251]""")

a(f"""
v_mov_b32 v252, 0
s_mul_i32 {sC1}, {sBR}, {4*1152}
s_add_u32 {sC1}, {sC1}, {32*1152}
s_cmp_eq_u32 {sBR}, 0
s_cbranch_scc0 L_kv_b
""")
for n in range(80): a(f"v_mov_b32 v{16+n}, 0")
accA = lambda T, t: 16 + 20*T + 4*t if t < 5 else 56 + 20*T + 4*(t - 5)
kv_loop("a", [(32*t, True) for t in range(5)] + [(144 + 32*t, False) for t in range(5)], accA)
stamp(3)
a(f"""
s_mul_i32 {sT}, {sP}, 10240
s_add_u32 {sT}, {sT}, {EXA}
v_lshl_add_u32 v2, v0, 4, {sT}
v_lshl_add_u32 v3, v0, 3, {sT}
""")
for T in range(2):
    for n in range(10): cvt(112 + 10*T + n, 16 + 20*T + 2*n)
    a(f"""ds_write_b128 v2, {v(112 + 10*T, 4)} offset:{2560*T}
    ds_write_b128 v2, {v(116 + 10*T, 4)} offset:{2560*T + 1024}
    ds_write_b64 v3, {v(120 + 10*T, 2)} offset:{2560*T + 2048}""")
for t in range(5):
    for T in range(2):
        for d in range(2): cvt(132 + 4*t + 2*T + d, 56 + 20*T + 4*t + 2*d)
    a(f"ds_write_b128 v2, {v(132 + 4*t, 4)} offset:{5120 + 1024*t}")
a(f"s_movk_i32 {sLO}, 9\ns_movk_i32 {sHI}, 15")
att_consts()
a(f"""
v_mov_b32 v10, v250
v_mov_b32 v11, v251
s_mul_i32 {sT}, {sP}, 2560
s_add_u32 {sT}, {sT}, {QX}
v_lshl_add_u32 v26, v0, 4, {sT}
v_lshl_add_u32 v27, v0, 3, {sT}
s_waitcnt lgkmcnt(0)
""")
for j in range(5):
    a("s_barrier")
    if j == 4:
        a("ds_read_b128 v[152:155], v26\nds_read_b128 v[156:159], v26 offset:1024\nds_read_b64 v[160:161], v27 offset:2048")
    wo_dma(j)
a("s_waitcnt lgkmcnt(0)")

a("L_att:")
stamp(5)
hi = lambda d, s_, m: a(f"v_cndmask_b32 v{d}, 0, v{s_}, {m}")
lo = lambda d, s_, m: a(f"v_cndmask_b32 v{d}, v{s_}, 0, {m}")
hi(164, 154, M1); a("v_mov_b32 v165, v155"); lo(166, 156, M1); lo(167, 157, M1)
lo(154, 154, M1); a("v_mov_b32 v155, 0")
hi(168, 156, M1); hi(169, 157, M1); lo(170, 158, M2); lo(171, 159, M1)
hi(158, 158, M2); hi(159, 159, M1)
QM = [152, 164, 168, 158]
for h in range(4):
    mfma(180 + 4*h, 122 + 2*h, QM[h], "v[12:15]")
    mfma(196 + 4*h, 112 + 2*h, QM[h], "v[16:19]")
a(f"s_mov_b32 s74, {f32(CSC)}\ns_mov_b32 s75, {f32(CSC)}")
for h in range(4):
    for r in range(4): a(f"v_max_f32 v{180+4*h+r}, v{180+4*h+r}, v{196+4*h+r}")
    a(f"v_max3_f32 v{104+h}, v{180+4*h}, v{181+4*h}, v{182+4*h}\nv_max_f32 v{104+h}, v{104+h}, v{183+4*h}")
def tree(op, fin):
    a(f"""v_permlane32_swap_b32 v104, v105
    v_permlane32_swap_b32 v106, v107
    {op} v104, v104, v105
    {op} v106, v106, v107
    v_permlane16_swap_b32 v104, v106
    {op} v104, v104, v106
    {fin}
    v_mov_b32 v105, v104
    v_permlane16_swap_b32 v104, v105
    v_mov_b32 v108, v104
    v_mov_b32 v109, v105
    v_permlane32_swap_b32 v104, v108
    v_permlane32_swap_b32 v105, v109""")
ZB = [104, 108, 105, 109]
tree("v_max_f32", f"v_mul_f32 v104, {f32(-CSC)}, v104")
def bc(z): return (f"v[{z}:{z+1}]", "0", "0") if z % 2 == 0 else (f"v[{z-1}:{z}]", "1", "1")
for h in range(4):
    zr, s0, s1 = bc(ZB[h])
    for d in range(2):
        r = 180 + 4*h + 2*d
        a(f"v_pk_fma_f32 {v(r,2)}, {v(r,2)}, {sPAIR}, {zr} op_sel:[0,0,{s0}] op_sel_hi:[1,1,{s1}]")
for h in range(4):
    for r in range(4): a(f"v_exp_f32 v{180+4*h+r}, v{180+4*h+r}")
for h in range(4): a(f"v_pk_add_f32 {v(196+2*h,2)}, {v(180+4*h,2)}, {v(182+4*h,2)}")
for h in range(4): a(f"v_add_f32 v{104+h}, v{196+2*h}, v{197+2*h}")
tree("v_add_f32", "v_rcp_f32 v104, v104")
for h in range(4):
    zr, s0, s1 = bc(ZB[h])
    for d in range(2):
        r = 180 + 4*h + 2*d
        a(f"v_pk_mul_f32 {v(r,2)}, {v(r,2)}, {zr} op_sel:[0,{s0}] op_sel_hi:[1,{s1}]")
    p = 212 + 4*h
    cvt(p, 180 + 4*h); cvt(p + 1, 182 + 4*h)
    a(f"""v_and_b32 v{p+2}, v{p}, v20
    v_and_b32 v{p+3}, v{p+1}, v21
    v_xor_b32 v{p}, v{p}, v{p+2}
    v_xor_b32 v{p+1}, v{p+1}, v{p+3}""")
for h in range(4):
    mfma(72 + 8*h, 132 + 4*h, 212 + 4*h, "0")
    mfma(76 + 8*h, 136 + 4*h, 212 + 4*h, "0")
a("v_and_b32 v1, 15, v0\nv_lshrrev_b32 v2, 4, v0\nv_lshlrev_b32 v1, 4, v1\nv_lshl_add_u32 v3, v2, 3, v1")
a(f"v_mov_b32 v4, {OOB}\nv_cndmask_b32 v3, v3, v4, {M2}")
cvt(228, 72); cvt(229, 74)
def sel(d, t, dd, m):
    cvt(d, 72 + 8*t + 2*dd); cvt(104 + dd, 76 + 8*(t-1) + 2*dd)
    a(f"v_cndmask_b32 v{d}, v{104+dd}, v{d}, {m}")
sel(230, 1, 0, M1); cvt(231, 82)
sel(232, 2, 0, M1); sel(233, 2, 1, M1); sel(234, 3, 0, M2); sel(235, 3, 1, M1)
cvt(236, 100); cvt(237, 102)
def tile_base():
    a(f"""s_lshl_b32 {sTAU}, {sP}, 1
    s_cmp_lt_u32 {sWAVE}, 4
    s_addc_u32 {sTAU}, {sTAU}, 0
    s_lshl_b32 {sT}, {sBR}, 4
    s_add_u32 {sT}, {sT}, {sR}
    s_lshl_b32 {sT}, {sT}, 3
    s_add_u32 {sT}, {sT}, {sTAU}
    s_mul_i32 {sTILE}, {sT}, 18432
    s_lshl_b32 {sFB}, {sT}, 10
    s_add_u32 {sFB}, {sFB}, {WS_FLAG2}
    s_lshl_b32 {sFL}, {sG}, 7
    s_add_u32 {sFL}, {sFL}, {sFB}
    s_lshl_b32 {sT}, {sG}, 11
    s_add_u32 {sT}, {sT}, {sTILE}
    s_lshl_b32 {sT2}, {sG}, 8
    s_add_u32 {sT2}, {sT2}, {sTILE}
    s_add_u32 {sT2}, {sT2}, 16384
    v_lshlrev_b32 v2, 4, v0
    buffer_store_dwordx4 v[228:231], v2, {WS}, {sT} offen sc1
    buffer_store_dwordx4 v[232:235], v2, {WS}, {sT} offen offset:1024 sc1""")
tile_base()
a(f"buffer_store_dwordx2 v[236:237], v3, {WS}, {sT2} offen sc1\ns_branch L_pub")

a("L_kv_b:")
a(f"v_mov_b32 v1, {f32(EPS)}\nv_cndmask_b32 v2, 0, v1, {MI8}")
for T in range(2):
    for t in range(9):
        for r in range(4): a(f"v_mov_b32 v{16 + 36*T + 4*t + r}, {'v1' if t < 4 else 'v2' if t == 4 else '0'}")
a(f"""
v_mov_b32 v4, 0
v_mov_b32 v5, 0
v_mov_b32 v6, 0
v_mov_b32 v7, 0
s_lshl_b32 {sT}, {sP}, 10
s_add_u32 {sT}, {sT}, {KVI}
v_lshl_add_u32 v3, v0, 4, {sT}
ds_write_b128 v3, v[4:7]
ds_write_b128 v3, v[4:7] offset:4096
""")
accB = lambda T, t: 16 + 36*T + 4*t
kv_loop("b", [(32*t, False) for t in range(9)], accB)
stamp(3)
phi_consts()
a(f"""
v_and_b32 v1, 15, v0
v_lshrrev_b32 v2, 4, v0
v_mul_u32_u24 v3, 2560, v2
s_mul_i32 {sT}, {sP}, 10240
s_add_u32 {sT}, {sT}, {EXA}
v_add_u32 v4, {sT}, v3
v_lshl_add_u32 v164, v1, 4, v4
v_min_u32 v5, 1, v1
v_lshl_add_u32 v165, v5, 4, v4
v_mov_b32 v6, 0x3f803f80
v_cmp_eq_u32 vcc, 0, v1
v_cndmask_b32 v168, 0, v6, vcc
v_cndmask_b32 v169, 0, v6, vcc
v_cndmask_b32 v170, 0, v6, vcc
v_cndmask_b32 v171, 0, v6, vcc
ds_write_b128 v165, v[168:171] offset:2304
""")
for t in range(5, 9):
    for T in range(2):
        for d in range(2): cvt(112 + 4*t + 2*T + d, accB(T, t) + 2*d)
    a(f"ds_write_b128 v164, {v(112 + 4*t, 4)} offset:{256*t}")
for T in range(2):
    for d in range(2): cvt(172 + 2*T + d, accB(T, 4) + 2*d)
def phi_tile(t):
    phi_list([(112 + 4*t + 2*T + d, accB(T, t) + 2*d) for T in range(2) for d in range(2)], 148)
    if t == 4:
        for n in range(4): a(f"v_cndmask_b32 v{128+n}, v{172+n}, v{128+n}, {MI8}")
    a(f"ds_write_b128 v164, {v(112 + 4*t, 4)} offset:{256*t}")
phi_tile(4); phi_tile(0)
a("s_barrier")
for t in (1, 2, 3): phi_tile(t)
a(f"""
s_mul_i32 {sT}, {sP}, 288
s_add_u32 {sT}, {sT}, {EXA}
v_add_u32 v4, {sT}, v3
v_lshl_add_u32 v152, v1, 4, v4
v_add_u32 v153, 1152, v152
v_add_u32 v154, 256, v152
v_add_u32 v5, {EXA + 2304}, v3
v_add_u32 v6, 16, v5
v_add_u32 v7, 1408, v152
v_cmp_gt_u32 vcc, 2, v1
v_cndmask_b32 v155, v6, v7, vcc
v_cmp_eq_u32 vcc, 2, v1
v_cndmask_b32 v155, v155, v5, vcc
v_add_u32 v7, 208, v152
v_subrev_u32 v9, 3, v1
v_cmp_gt_u32 vcc, 2, v9
v_cndmask_b32 v156, v6, v7, vcc
v_add_u32 v7, 1328, v152
v_subrev_u32 v9, 5, v1
v_cmp_gt_u32 vcc, 2, v9
v_cndmask_b32 v157, v6, v7, vcc
v_cmp_eq_u32 vcc, 7, v1
v_cndmask_b32 v157, v157, v5, vcc
s_waitcnt lgkmcnt(0)
s_barrier
""")
def kv_rd(pp):
    for n in range(6): a(f"ds_read_b128 {v(16 + 24*pp + 4*n, 4)}, v{152+n} offset:{10240*pp}")
kv_rd(0); kv_rd(1)
for pp in range(4):
    a(f"s_waitcnt lgkmcnt({6 if pp < 3 else 0})")
    if pp < 2: kv_rd(pp + 2)
    b = 16 + 24*pp; c0 = "0" if pp == 0 else None
    mfma(112, b, b + 4, c0)
    mfma(116, b, b + 12, c0)
    mfma(116, b + 4, b + 16)
    mfma(116, b + 8, b + 20)
a(f"""
s_lshl_b32 {sT}, {sG}, 2
s_add_u32 {sT}, {sT}, {sP}
s_lshl_b32 {sT}, {sT}, 4
s_lshl_b32 {sFB}, {sT}, 7
s_add_u32 {sFB}, {sFB}, {WS_FLAG1}
s_lshl_b32 {sFL}, {sR}, 7
s_add_u32 {sFL}, {sFL}, {sFB}
s_mul_i32 {sTILE}, {sT}, 1536
s_add_u32 {sTILE}, {sTILE}, {WS_PART}
s_mul_i32 {sT}, {sR}, 1536
s_add_u32 {sT}, {sT}, {sTILE}
v_lshlrev_b32 v158, 4, v0
v_lshl_add_u32 v4, v2, 3, v1
v_lshlrev_b32 v4, 4, v4
v_mov_b32 v5, {OOB}
v_cndmask_b32 v4, v5, v4, {MI8}
buffer_store_dwordx4 v[112:115], v158, {WS}, {sT} offen sc1
buffer_store_dwordx4 v[116:119], v4, {WS}, {sT} offen offset:1024 sc1
v_mov_b32 v10, v250
v_mov_b32 v11, v251
""")
stamp(5)
def flag_out():
    a(f"""v_lshlrev_b32 v5, 3, v0
    s_mov_b64 exec, 0xffff
    buffer_store_dwordx2 v[10:11], v5, {WS}, {sFL} offen sc1
    s_mov_b64 exec, -1""")
def flag_wait(tag, n):
    a(f"""v_lshlrev_b32 v5, 7, v0
    s_mov_b32 {sCNT}, 0
    s_mov_b64 exec, {(1 << n) - 1}
    L_poll_{tag}:
    buffer_load_dwordx2 v[6:7], v5, {WS}, {sFB} offen sc1
    s_add_u32 {sCNT}, {sCNT}, 1
    s_waitcnt vmcnt(0)
    v_cmp_ne_u64 vcc, v[6:7], v[10:11]
    s_cmp_ge_u32 {sCNT}, {OPT['spin']}
    s_cbranch_scc1 L_got_{tag}
    s_cbranch_vccz L_got_{tag}
    s_sleep {OPT['sleep']}
    s_branch L_poll_{tag}
    L_got_{tag}:
    s_mov_b64 exec, -1""")
def kvi_off(dst, sreg, t):
    a(f"""v_bfe_u32 v{dst}, v{sreg}, 2, 2
    v_lshlrev_b32 v{dst}, 4, v{dst}
    v_lshrrev_b32 v{t}, 4, v{sreg}
    v_lshl_add_u32 v{dst}, v{t}, 3, v{dst}
    v_and_b32 v{t}, 3, v{sreg}
    v_lshl_add_u32 v{dst}, v{t}, 1, v{dst}""")
a(f"""
s_mul_i32 {sC0}, {sP}, 1520
s_add_u32 {sC0}, {sC0}, {KVI}
s_lshl_b32 {sT2}, {sP}, 1
v_lshl_add_u32 v4, v2, 2, {sT2}
""")
kvi_off(160, 4, 5); a("v_add_u32 v4, 2, v4"); kvi_off(161, 4, 5)
a(f"""
v_mul_u32_u24 v6, 80, v1
v_add_u32 v6, {sC0}, v6
v_add_u32 v160, v160, v6
v_add_u32 v161, v161, v6
v_and_b32 v1, 7, v0
v_bfe_u32 v2, v0, 3, 2
v_lshl_add_u32 v4, v2, 2, {sT2}
""")
kvi_off(162, 4, 5); a("v_add_u32 v4, 2, v4"); kvi_off(163, 4, 5)
a(f"""
v_mul_u32_u24 v6, 80, v1
v_add_u32 v6, {sC0}, v6
v_add_u32 v6, 1280, v6
v_add_u32 v162, v162, v6
v_add_u32 v163, v163, v6
v_mov_b32 v7, {TRASH}
v_cmp_gt_u32 vcc, 3, v1
v_cndmask_b32 v162, v7, v162, vcc
v_cndmask_b32 v163, v7, v163, vcc
s_add_u32 {sT}, {sT2}, 16
v_mov_b32 v4, {sT}
""")
kvi_off(9, 4, 5)
a(f"""
v_add_u32 v9, v9, v6
v_subrev_u32 v9, 400, v9
v_and_b32 v4, 31, v0
v_subrev_u32 v4, 5, v4
v_cmp_gt_u32 vcc, 3, v4
v_cndmask_b32 v162, v162, v9, vcc
s_add_u32 {sT}, {sT2}, 13
v_add_u32 v4, {sT}, v1
""")
kvi_off(164, 4, 5)
a(f"""
v_mul_u32_u24 v6, 320, v2
v_add3_u32 v164, v164, v6, {sC0}
v_subrev_u32 v4, 3, v1
v_cmp_gt_u32 vcc, 2, v4
v_cndmask_b32 v164, v7, v164, vcc
v_lshrrev_b32 v4, 5, v0
v_mul_u32_u24 v4, 1536, v4
v_and_b32 v5, 31, v0
v_lshl_add_u32 v159, v5, 4, v4
s_waitcnt vmcnt(0)
""")
flag_out()
a("s_barrier")
wo_dma(0)
a("s_barrier\ns_waitcnt vmcnt(5)")
stamp(6)
flag_wait("b1", 16)
stamp(7)
for n in range(16):
    if n: a(f"s_add_u32 {sT}, {sTILE}, {1536*n}")
    a(f"buffer_load_dwordx4 {v(16 + 4*n, 4)}, v158, {WS}, {sT if n else sTILE} offen sc1")
    if n % 2: a(f"s_sub_u32 {sT}, {sT}, 1536\nbuffer_load_dwordx4 {v(168 + 2*(n-1), 4)}, v159, {WS}, {sT} offen offset:1024 sc1")
wo_dma(1); wo_dma(2)
for n in range(1, 16):
    a(f"s_waitcnt vmcnt({10 + 24 - (n + 1 + (n + 1)//2)})")
    for d in range(2): a(f"v_pk_add_f32 {v(16 + 2*d, 2)}, {v(16 + 2*d, 2)}, {v(16 + 4*n + 2*d, 2)}")
    if n % 2 and n > 1:
        for d in range(2): a(f"v_pk_add_f32 {v(168 + 2*d, 2)}, {v(168 + 2*d, 2)}, {v(168 + 2*(n-1) + 2*d, 2)}")
for r in range(4): a(f"v_mov_b32 v{172+r}, v{168+r}")
cvt(20, 16); cvt(21, 18)
a("ds_write_b32 v160, v20\nds_write_b32 v161, v21")
for r in range(4): a(f"v_permlane32_swap_b32 v{168+r}, v{172+r}")
for d in range(2): a(f"v_pk_add_f32 {v(168 + 2*d, 2)}, {v(168 + 2*d, 2)}, {v(172 + 2*d, 2)}")
cvt(22, 168); cvt(23, 170)
a(f"""
ds_write_b32 v162, v22
ds_write_b32 v163, v23
ds_write_b16 v164, v22
ds_write_b16_d16_hi v164, v22 offset:80
ds_write_b16 v164, v23 offset:160
ds_write_b16_d16_hi v164, v23 offset:240
s_mul_i32 {sT}, {sP}, 2560
s_add_u32 {sT}, {sT}, {QX}
v_lshl_add_u32 v26, v0, 4, {sT}
v_lshl_add_u32 v27, v0, 3, {sT}
s_waitcnt lgkmcnt(0)
s_barrier
ds_read_b128 v[152:155], v26
ds_read_b128 v[156:159], v26 offset:1024
ds_read_b64 v[160:161], v27 offset:2048
""")
a("L_ob:")
stamp(8)
a(f"""
v_and_b32 v1, 15, v0
v_lshrrev_b32 v2, 4, v0
v_mul_u32_u24 v4, 80, v1
v_lshl_add_u32 v4, v2, 4, v4
v_add_u32 v4, {KVI}, v4
v_and_b32 v5, 3, v0
v_min_u32 v5, 2, v5
v_mul_u32_u24 v5, 80, v5
v_lshl_add_u32 v5, v2, 4, v5
v_add_u32 v5, {KVI + 1280}, v5
""")
for h in range(4):
    a(f"ds_read_b128 {v(112 + 4*h, 4)}, v4 offset:{1520*h}\nds_read_b128 {v(128 + 4*h, 4)}, v5 offset:{1520*h}")
a(f"""
v_mov_b32 v12, 0
v_mov_b32 v13, 0
v_mov_b32 v14, {f32(EPS)}
v_mov_b32 v15, {f32(EPS)}
v_lshlrev_b32 v1, 4, v1
v_lshl_add_u32 v3, v2, 2, v1
""")
for h in range(4):
    a(f"s_waitcnt lgkmcnt({6 - 2*h})")
    mfma(196 + 4*h, 128 + 4*h, 152 + 2*h, "v[12:15]")
    mfma(180 + 4*h, 112 + 4*h, 152 + 2*h, "0")
for h in range(4): a(f"v_rcp_f32 v{198+4*h}, v{198+4*h}")
for h in range(4):
    for r in (196 + 4*h, 180 + 4*h, 182 + 4*h):
        a(f"v_pk_mul_f32 {v(r,2)}, {v(r,2)}, {v(198+4*h,2)} op_sel_hi:[1,0]")
    cvt(228 + 2*h, 180 + 4*h); cvt(229 + 2*h, 182 + 4*h); cvt(104 + h, 196 + 4*h)
a(f"""
v_cndmask_b32 v236, v104, v105, {M1}
v_cndmask_b32 v236, v236, v106, {M2}
v_cndmask_b32 v236, v236, v107, {M3}
""")
tile_base()
a(f"""
buffer_store_dword v236, v3, {WS}, {sT2} offen sc1
s_cmp_lt_u32 {sWAVE}, 4
s_cbranch_scc0 L_pub
""")
wo_dma(3); wo_dma(4)

a("L_pub:")
frag_lane_addr(29, 160)
a(f"""
v_add_u32 v30, 46080, v29
v_lshlrev_b32 v28, 4, v0
s_waitcnt vmcnt(0)
""")
flag_out()
a("s_barrier\ns_waitcnt vmcnt(0)")
stamp(6)
flag_wait("o", 8)
stamp(7)
for s in range(18):
    if s < 16:
        a(f"""s_lshl_b32 {sT}, {sG}, 1
        s_add_u32 {sT}, {sT}, {s}
        s_and_b32 {sT}, {sT}, 15
        s_lshl_b32 {sT}, {sT}, 10
        s_add_u32 {sT}, {sT}, {sTILE}""")
    else:
        a(f"s_add_u32 {sT}, {sTILE}, {1024*s}")
    a(f"buffer_load_dwordx4 {v(112 + 4*s, 4)}, v28, {WS}, {sT} offen sc1")
wq_reads(0)
assert all((F * 7282) >> 16 == F // 9 for F in range(192))
a(f"""
s_mul_i32 {sT}, {sWAVE}, {16*OPITCH}
s_add_u32 {sT}, {sT}, {OUTST}
v_and_b32 v1, 15, v0
v_lshrrev_b32 v2, 4, v0
v_mul_u32_u24 v1, {OPITCH}, v1
v_lshl_add_u32 v1, v2, 3, v1
v_add_u32 v12, {sT}, v1
v_mov_b32 v9, {OOB}
""")
for n in range(3):
    a(f"""v_add_u32 v1, {64*n}, v0
    v_mul_u32_u24 v2, 7282, v1
    v_lshrrev_b32 v2, 16, v2
    v_mul_u32_u24 v3, 9, v2
    v_sub_u32 v3, v1, v3
    v_mul_u32_u24 v4, {OPITCH}, v2
    v_lshl_add_u32 v4, v3, 4, v4
    v_add_u32 v{13+n}, {sT}, v4
    v_mul_u32_u24 v4, 4608, v2
    v_lshl_add_u32 v{16+n}, v3, 4, v4""")
a(f"""
v_cmp_gt_u32 vcc, 16, v0
v_cndmask_b32 v18, v9, v18, vcc
v_cndmask_b32 v15, v13, v15, vcc
s_lshl_b32 {sT}, {sR}, 7
s_lshr_b32 {sT2}, {sP}, 1
s_lshl_b32 {sT2}, {sT2}, 6
s_add_u32 {sT}, {sT}, {sT2}
s_and_b32 {sT2}, {sTAU}, 1
s_lshl_b32 {sT2}, {sT2}, 5
s_add_u32 {sT}, {sT}, {sT2}
s_and_b32 {sT2}, {sP}, 1
s_add_u32 {sT}, {sT}, {sT2}
s_mul_i32 {sC0}, {sT}, 2304
s_mul_i32 {sT}, {sBR}, 1152
s_add_u32 {sC0}, {sC0}, {sT}
s_mul_i32 {sT}, {sG}, 144
s_add_u32 {sC0}, {sC0}, {sT}
""")
for s in range(18):
    buf = 72 + 20 * (s & 1)
    for t in range(5):
        if s < 17:
            nb = 72 + 20 * ((s + 1) & 1); s1 = s + 1
            for h in range(2): trd(nb + 4*t + 2*h, 29 + (s1 >= 9), (s1 - 9*(s1 >= 9)) * 5120 + h * 1280 + 32*t)
            a(f"s_waitcnt lgkmcnt(10)" + (f" vmcnt({17 - s})" if t == 0 else ""))
        else:
            a(f"s_waitcnt lgkmcnt({8 - 2*t})" + (" vmcnt(0)" if t == 0 else ""))
        mfma(32 + 4*t, buf + 4*t, 112 + 4*s, "0" if s == 0 else None)
stamp(9)
for t in range(5):
    cvt(52 + 2*t, 32 + 4*t); cvt(53 + 2*t, 34 + 4*t)
    a(f"ds_write_b64 v12, {v(52 + 2*t, 2)} offset:{32*t}")
a("s_waitcnt lgkmcnt(0)")
for n in range(3): a(f"ds_read_b128 {v(64 + 4*n, 4)}, v{13+n}")
for n in range(3):
    a(f"s_waitcnt lgkmcnt({2-n})\nbuffer_store_dwordx4 {v(64 + 4*n, 4)}, v{16+n}, {OUT}, {sC0} offen")
if STAMPS:
    a(f"""s_waitcnt vmcnt(0)
    s_memrealtime s[76:77]
    s_lshl_b32 {sT}, s2, 3
    s_add_u32 {sT}, {sT}, {sWAVE}
    s_lshl_b32 {sT}, {sT}, 6
    s_add_u32 {sT}, {sT}, {WS_STAMP}
    s_waitcnt lgkmcnt(0)""")
    for n in range(10): a(f"v_mov_b32 v{32+n}, s{82+2*n}")
    a("v_mov_b32 v42, s76\nv_mov_b32 v43, s66\nv_mov_b32 v1, 0\ns_mov_b64 exec, 1")
    for n in range(3): a(f"buffer_store_dwordx4 {v(32+4*n,4)}, v1, {WS}, {sT} offen offset:{16*n}")
a("L_end:\ns_endpgm")

HEAD = open("concat_heads__sliding_local_dilated__linear_attn_block__prompt.s.ref").read().split("; Override launch")[0]
text = HEAD + f"""; One fused launch: 256 workgroups (branch, 128-row tile, 4-head group), 8 waves each.
; @launch grid=(256,1,1) block=(512,1,1) lds=163840
.amdgcn_target "amdgcn-amd-amdhsa--gfx950"
.text
.globl {NAME}
.p2align 8
.type {NAME},@function
{NAME}:
""" + "\n".join(hz.pad(a.lines)) + f"""
.section .rodata,"a"
.p2align 6
.amdhsa_kernel {NAME}
  .amdhsa_next_free_vgpr 256
  .amdhsa_next_free_sgpr 102
  .amdhsa_accum_offset 256
  .amdhsa_group_segment_fixed_size 0
  .amdhsa_kernarg_size 72
  .amdhsa_user_sgpr_count 2
  .amdhsa_user_sgpr_kernarg_segment_ptr 1
  .amdhsa_system_sgpr_workgroup_id_x 1
.end_amdhsa_kernel
"""
open(sys.argv[1], "w").write(text)
```
